```python
import torch

def _softmax(x, axis=-1):
    return torch.softmax(x, dim=axis)
def _gelu(x):
    return torch.nn.functional.gelu(x, approximate="tanh")
def _silu(x):
    return torch.nn.functional.silu(x)
def _sigmoid(x):
    return torch.sigmoid(x)
def _layernorm(x, axis=-1, eps=1e-5):
    m = x.mean(dim=axis, keepdim=True)
    v = x.var(dim=axis, keepdim=True, unbiased=False)
    return (x - m) / torch.sqrt(v + eps)
def _scatter_add(tgt, idx, src, axis=0):
    return tgt.clone().index_add_(axis, idx, src)
def _segment_sum(src, seg, n):
    out = torch.zeros((n,) + src.shape[1:], dtype=src.dtype)
    return out.index_add_(0, seg, src)
def _pad(x, pw):
    flat = tuple(v for pair in reversed(pw) for v in pair)
    return torch.nn.functional.pad(x, flat)

kernel_name = 'interleave_layers__sliding_block__glu_gated_reglu__prompt'

def setup_inputs():

    _w = (lambda a: (lambda t: t.to(torch.bfloat16) if t.is_floating_point() else t)(torch.as_tensor(a)))
    def _A_setup():
        B, S, D = 1, 2048, 640
        return {
            "x": _w((lambda *s: torch.randn(*s, dtype=torch.bfloat16) * 0.05)(B, S, D)),
            "wqkv": _w((lambda *s: torch.randn(*s, dtype=torch.bfloat16) * 0.05)(D, 3 * D)),
            "wo": _w((lambda *s: torch.randn(*s, dtype=torch.bfloat16) * 0.05)(D, D)),
        }
    _A_in = _A_setup()

    def _B_setup():
        B, S, D, F = 1, 2048, 640, 1728
        return {
            "x": _w((lambda *s: torch.randn(*s, dtype=torch.bfloat16) * 0.05)(B, S, D)),
            "W_gate": _w((lambda *s: torch.randn(*s, dtype=torch.bfloat16) * 0.8)(D, F) * (2.0 / D) ** 0.5),
            "W_up": _w((lambda *s: torch.randn(*s, dtype=torch.bfloat16) * 0.8)(D, F) * (2.0 / D) ** 0.5),
            "W_down": _w((lambda *s: torch.randn(*s, dtype=torch.bfloat16) * 0.8)(F, D) * (1.0 / F) ** 0.5),
        }
    _B_in = _B_setup()

    return {
        "A_x": _A_in["x"],
        "A_wqkv": _A_in["wqkv"],
        "A_wo": _A_in["wo"],
        "B_x": _B_in["x"],
        "B_W_gate": _B_in["W_gate"],
        "B_W_up": _B_in["W_up"],
        "B_W_down": _B_in["W_down"],
    }

def reference(A_x, A_wqkv, A_wo, B_x, B_W_gate, B_W_up, B_W_down):
    def _A_ref(x, wqkv, wo):
        B, S, D = x.shape
        H = 32; Dh = D // H; W = 256
        qkv = (lambda x, *d: x.permute(*d))((x @ wqkv).reshape(B, S, 3, H, Dh), 2, 0, 3, 1, 4)
        q, k, v = qkv[0], qkv[1], qkv[2]
        scores = torch.einsum("bhqd,bhkd->bhqk", q, k) * (Dh ** -0.5)
        idx = torch.arange(S)
        mask = (idx[:, None] - idx[None, :] >= 0) & (idx[:, None] - idx[None, :] < W)
        scores = torch.where(mask[None, None], scores, -1e9)
        p = _softmax(scores, axis=-1)
        o = torch.einsum("bhqk,bhkd->bhqd", p, v)
        return (lambda x, *d: x.permute(*d))(o, 0, 2, 1, 3).reshape(B, S, D) @ wo

    def _B_ref(x, W_gate, W_up, W_down):
        gate = torch.einsum("bsd,df->bsf", x, W_gate)
        up = torch.einsum("bsd,df->bsf", x, W_up)
        gate = gate * (lambda x, dt: x.to(dt))(gate > 0, gate.dtype)
        h = gate * up
        return torch.einsum("bsf,fd->bsd", h, W_down)

    x = A_x
    x = x + _A_ref(_layernorm(x, axis=-1), A_wqkv, A_wo)
    x = x + _B_ref(_layernorm(x, axis=-1), B_W_gate, B_W_up, B_W_down)
    x = x + _A_ref(_layernorm(x, axis=-1), A_wqkv, A_wo)
    x = x + _B_ref(_layernorm(x, axis=-1), B_W_gate, B_W_up, B_W_down)
    return x
```

```python
import re

def parse_reg(tok):
    tok = tok.strip()
    neg = tok.startswith('-')
    if neg:
        tok = tok[1:]
    m = re.fullmatch(r'abs\((.*)\)|\|(.*)\|', tok)
    if m:
        tok = m.group(1) or m.group(2)
    m = re.fullmatch(r'([vas])(\d+)', tok)
    if m:
        return [(m.group(1), int(m.group(2)))]
    m = re.fullmatch(r'([vas])\[(\d+):(\d+)\]', tok)
    if m:
        return [(m.group(1), i) for i in range(int(m.group(2)), int(m.group(3)) + 1)]
    if tok == 'vcc':
        return [('s', 'vcc')]
    if tok == 'exec':
        return [('s', 'exec')]
    if tok == 'm0':
        return [('s', 'm0')]
    return []

TRANS = ('v_exp_f32', 'v_log_f32', 'v_rcp_f32', 'v_rsq_f32', 'v_sqrt_f32', 'v_sin_f32', 'v_cos_f32', 'v_rcp_iflag_f32')
NODST_S = ('s_cmp', 's_cbranch', 's_waitcnt', 's_barrier', 's_nop', 's_branch', 's_setprio', 's_endpgm', 's_sleep', 's_bitcmp', 's_setpc')

class Ins:
    __slots__ = ('text', 'op', 'dst', 'src', 'kind', 'passes', 'tag', 'wide', 'srcC', 'srcAB', 'states', 'dpp')
    def __init__(self, text, tag=None):
        self.text = text
        self.tag = tag
        parts = text.split(None, 1)
        op = self.op = parts[0]
        rest = parts[1] if len(parts) > 1 else ''
        toks = [t.strip() for t in rest.split(',')] if rest else []
        mods = ''
        if toks:
            last = toks[-1].split(None, 1)
            if len(last) > 1:
                toks[-1] = last[0]
                mods = last[1]
        regs = [parse_reg(t) for t in toks]
        flat = lambda l: set(x for r in l for x in r)
        self.dst, self.src = set(), set()
        self.passes = 0
        self.wide = False
        self.srcC, self.srcAB = set(), set()
        self.states = 1
        self.dpp = 'dpp' in op or 'row_' in mods or 'quad_perm' in mods
        if op.startswith('v_mfma'):
            self.kind = 'mfma'
            self.passes = 8 if '32x32' in op else 4
            self.dst = flat(regs[:1]); self.srcAB = flat(regs[1:3]); self.srcC = flat(regs[3:4])
            self.src = self.srcAB | self.srcC
        elif op.startswith('v_'):
            self.kind = 'valu'
            if op.startswith('v_permlane') and 'swap' in op:
                self.dst = flat(regs[:2]); self.src = flat(regs[:2])
            elif op.startswith(('v_add_co', 'v_sub_co', 'v_addc_co', 'v_subb_co')):
                self.dst = flat(regs[:2]); self.src = flat(regs[2:])
            elif op.startswith(('v_fmac', 'v_dot2c', 'v_writelane')):
                self.dst = flat(regs[:1]); self.src = flat(regs)
            else:
                self.dst = flat(regs[:1]); self.src = flat(regs[1:])
        elif op.startswith('ds_'):
            self.kind = 'ds'
            if op.startswith(('ds_read', 'ds_bpermute', 'ds_permute', 'ds_swizzle')):
                self.dst = flat(regs[:1]); self.src = flat(regs[1:])
            else:
                self.src = flat(regs)
        elif op.startswith(('buffer_', 'global_')):
            self.kind = 'vmem'
            islds = ' lds' in (' ' + mods) or '_lds_' in op
            if islds:
                self.src = flat(regs) | {('s', 'm0')}
                self.kind = 'dma'
            elif '_load' in op:
                self.dst = flat(regs[:1]); self.src = flat(regs[1:])
            elif '_atomic' in op and 'sc0' in mods:
                self.dst = flat(regs[:1]); self.src = flat(regs[1:])
            else:
                self.src = flat(regs)
                if 'x4' in op or 'x3' in op:
                    self.wide = True
                    d = regs[0] if op.startswith('buffer_') else regs[1]
                    self.srcC = set(d)
        elif op.startswith(('s_load', 's_buffer_load', 's_memtime', 's_memrealtime')):
            self.kind = 'smem'
            self.dst = flat(regs[:1]); self.src = flat(regs[1:])
        elif op.startswith('s_'):
            self.kind = 'salu'
            if op.startswith(NODST_S):
                self.src = flat(regs)
                if op == 's_nop':
                    self.states = int(toks[0]) + 1
            elif 'saveexec' in op:
                self.dst = flat(regs[:1]) | {('s', 'exec')}; self.src = flat(regs[1:])
            elif op.startswith(('s_addk', 's_mulk')):
                self.dst = flat(regs[:1]); self.src = flat(regs[:1])
            else:
                self.dst = flat(regs[:1]); self.src = flat(regs[1:])
        else:
            raise ValueError('unknown instruction: ' + text)

def is_v(r):
    return r[0] in 'va'

def need_states(p, c):
    n = 0
    pv = set(r for r in p.dst if is_v(r))
    ps = set(r for r in p.dst if r[0] == 's')
    if p.kind == 'valu':
        if pv & c.src:
            if c.kind == 'mfma':
                n = max(n, 2)
            if c.op.startswith('v_permlane') or (c.kind == 'valu' and c.dpp):
                n = max(n, 2)
            if c.op.startswith(('v_readlane', 'v_readfirstlane')):
                n = max(n, 1)
            if p.op.startswith(TRANS) and c.kind == 'valu' and not c.op.startswith(TRANS):
                n = max(n, 1)
        if ps & c.src:
            if c.kind == 'valu':
                n = max(n, 4 if c.op.startswith(('v_readlane', 'v_writelane')) else 2)
            if c.kind in ('vmem', 'dma'):
                n = max(n, 5)
            if c.kind in ('salu', 'smem'):
                n = max(n, 2)
    if p.kind == 'mfma':
        big = p.passes == 8
        if c.kind == 'mfma':
            if p.dst & c.srcAB:
                n = max(n, 12 if big else 8)
            if p.dst & c.srcC and not (p.dst == c.srcC and p.op == c.op):
                n = max(n, 10 if big else 6)
            if p.dst & c.dst and not (p.dst == c.srcC and p.op == c.op):
                n = max(n, 10 if big else 6)
        elif p.dst & (c.src | c.dst):
            n = max(n, 12 if big else 8)
        if c.kind == 'valu' and (p.srcC & c.dst):
            n = max(n, 7 if big else 3)
    if p.kind == 'salu' and ('s', 'm0') in p.dst and c.kind == 'dma':
        n = max(n, 1)
    if p.wide and (p.srcC & c.dst):
        n = max(n, 2)
    return n

class Asm:
    def __init__(self):
        self.out = []
        self.hist = []
        self.vm = []
        self.lg = []
        self.nops = 0
        self.count = 0
        self.uid = 0

    def raw(self, line):
        self.out.append(line)

    def comment(self, s):
        self.out.append('; ' + s)

    def _issue(self, ins):
        need = 0
        dist = 0
        for p in reversed(self.hist):
            k = need_states(p, ins) - dist
            need = max(need, k)
            dist += p.states
            if dist >= 12:
                break
        while need > 0:
            k = min(need, 16)
            nop = Ins(f's_nop {k-1}')
            self.out.append('    ' + nop.text)
            self.hist.append(nop)
            self.nops += 1
            need -= k
        self.out.append('    ' + ins.text)
        self.hist.append(ins)
        self.hist = self.hist[-16:]
        self.count += 1

    def _wait(self, vm=None, lg=None):
        parts = []
        if vm is not None:
            vm = min(vm, 63)
            if vm < len(self.vm):
                parts.append(f'vmcnt({vm})')
                self.vm = self.vm[len(self.vm) - vm:] if vm else []
        if lg is not None:
            if any(o[2] for o in self.lg):
                lg = 0
            lg = min(lg, 15)
            if lg < len(self.lg):
                parts.append(f'lgkmcnt({lg})')
                self.lg = self.lg[len(self.lg) - lg:] if lg else []
        if parts:
            self._issue(Ins('s_waitcnt ' + ' '.join(parts)))

    def _needed(self, lst, regs):
        n = None
        for i, o in enumerate(lst):
            if o[0] & regs:
                n = len(lst) - i - 1
        return n

    def wait_regs(self, *toks):
        regs = set()
        for t in toks:
            regs |= set(parse_reg(t))
        self._wait(self._needed(self.vm, regs), self._needed(self.lg, regs))

    def wait_tag(self, *tags):
        n = None
        for i, o in enumerate(self.vm):
            if o[1] in tags:
                n = len(self.vm) - i - 1
        m = None
        for i, o in enumerate(self.lg):
            if o[1] in tags:
                m = len(self.lg) - i - 1
        self._wait(n, m)

    def wait_vm(self, n=0):
        self._wait(vm=n)

    def wait_lg(self, n=0):
        self._wait(lg=n)

    def force_wait(self, text):
        m = re.search(r'vmcnt\((\d+)\)', text)
        if m:
            n = int(m.group(1)); self.vm = self.vm[len(self.vm) - n:] if n and n < len(self.vm) else ([] if n == 0 else self.vm)
        m = re.search(r'lgkmcnt\((\d+)\)', text)
        if m:
            n = int(m.group(1)); self.lg = self.lg[len(self.lg) - n:] if n and n < len(self.lg) else ([] if n == 0 else self.lg)
        self._issue(Ins(text))

    def __call__(self, text, tag=None):
        for line in text.split('\n'):
            line = line.strip()
            if not line:
                continue
            ins = Ins(line, tag)
            regs = ins.src | ins.dst
            self._wait(self._needed(self.vm, regs), self._needed(self.lg, regs))
            if ins.kind in ('vmem', 'dma') and len(self.vm) >= 63:
                self._wait(vm=62)
            if ins.kind == 'ds' and len(self.lg) >= 15:
                self._wait(lg=14)
            self._issue(ins)
            if ins.kind in ('vmem', 'dma'):
                self.vm.append((ins.dst, tag))
            elif ins.kind == 'ds':
                self.lg.append((ins.dst, tag, False))
            elif ins.kind == 'smem':
                self.lg.append((ins.dst, tag, True))

    def settle(self):
        need = 0
        dist = 0
        for p in reversed(self.hist):
            w = {'mfma': 12 if p.passes == 8 else 8, 'valu': 5 if any(r[0] == 's' for r in p.dst) else 2}.get(p.kind, 2 if p.wide else 1)
            need = max(need, w - dist)
            dist += p.states
            if dist >= 12:
                break
        if need > 0:
            self._issue(Ins(f's_nop {need-1}'))

    def label(self, name):
        self.settle()
        self.out.append(name + ':')
        self.hist = []

    def newlabel(self, stem):
        self.uid += 1
        return f'L_{stem}_{self.uid}'

    def branch(self, text):
        self.settle()
        self._issue(Ins(text))

    def snapshot(self):
        return (list(self.vm), list(self.lg))

    def restore(self, snap):
        self.vm, self.lg = list(snap[0]), list(snap[1])

    def text(self):
        return '\n'.join(self.out) + '\n'

def interleave(a, main, fill, start=0, per=1, every=1):
    def put(x):
        if callable(x):
            x()
        elif isinstance(x, tuple):
            a(x[0], tag=x[1])
        else:
            a(x)
    fill = list(fill)
    for i, m in enumerate(main):
        put(m)
        if i >= start and (i - start) % every == 0:
            for _ in range(per):
                if fill:
                    put(fill.pop(0))
    for x in fill:
        put(x)
```

```python
import numpy as np

S, D, F, H, DH, WIN = 2048, 640, 1728, 32, 20, 256
KB = 1024
MB = 1024 * 1024

INBOX = 0
TEAMF = 32 * KB
FLAG_END = 64 * KB
PACKA = 1 * MB; PACKA_SZ = 160 * KB
PACKC = PACKA + 16 * PACKA_SZ; PACKC_SZ = 100 * KB
PACKD = PACKC + 8 * PACKC_SZ; PACKD_SZ = 280 * KB
PACKE = PACKD + 16 * PACKD_SZ; PACKE_SZ = 272 * KB
CSA = PACKE + 8 * PACKE_SZ
CSD = CSA + 10 * 16 * 8 * 16 * 4
_e = (CSD + 8 * 108 * 32 * 4 + 4095) // 4096 * 4096
BLK = 5632
KV_SZ = 256 * 4 * BLK
KV = [_e, _e + KV_SZ]
_e += 2 * KV_SZ
ACT = 64 * 40 * KB
OB = [_e, _e + ACT]; _e += 2 * ACT
X1 = [_e, _e + ACT]; _e += 2 * ACT
X2 = _e; _e += ACT
HSZ = 64 * 108 * KB
HB = [_e, _e + HSZ]; _e += 2 * HSZ
STSZ = 8 * 2 * S * 4
ST1 = [_e, _e + STSZ]; _e += 2 * STSZ
ST2 = _e; _e += STSZ
DBG = _e; _e += 1 * MB
WS_USED = _e

TF_O, TF_X1, TF_H1, TF_H2, TF_X2, TF_PC, TF_PD, TF_PE = range(8)

def wg_role(wg):
    xcd, j = wg & 7, wg >> 3
    return 2 * xcd + (j >> 4), j & 15

A_TILES = ['Ka', 'Kb', 'T4', 'V0', 'V1', 'V2', 'Qa', 'Qb']
def colA(g, tile, m):
    if tile == 'Qa': return 40 * g + m
    if tile == 'Qb': return 40 * g + 20 + m
    if tile == 'Ka': return 640 + 40 * g + m
    if tile == 'Kb': return 640 + 40 * g + 20 + m
    if tile == 'T4': return [0, 0, 640, 640][m >> 2] + 40 * g + [16, 36, 16, 36][m >> 2] + (m & 3)
    return 1280 + 40 * g + 16 * int(tile[1]) + m
def fragA_index(ti, s):
    return s * 6 + ti if ti < 6 else 120 + s * 2 + (ti - 6)

def kC(s, q, j):
    if s < 16:
        return 40 * s + 20 * (q >> 1) + 4 * (q & 1) + (j if j < 4 else 8 + j - 4)
    g = 4 * (s - 16) + q
    return 40 * g + (16 + j if j < 4 else 36 + j - 4)

def kD(sig, h, j):
    c, u = divmod(sig, 5)
    if u < 4:
        p, q = u >> 1, 2 * (u & 1) + h
        return 80 * c + 32 * p + 4 * q + (j if j < 4 else 16 + j - 4)
    return 80 * c + 64 + 4 * h + (j if j < 4 else 8 + j - 4)
def f0(g):
    return 27 * (g >> 2) + [0, 6, 13, 20][g & 3]
def fragD_index(i, sig):
    if i < 3: return 3 * sig + i
    if i < 5: return 120 + 2 * sig + (i - 3)
    return 200 + 40 * (i - 5) + sig
def hpos(g, i):
    G, u = g >> 2, g & 3
    if i < 5: return 5 * g + i
    if u == 0 and i == 6: return None
    return 80 + 7 * G + max(0, 2 * u - 1) + (i - 5)
POS2TILE = [None] * 108
for _g in range(16):
    for _i in range(7):
        _p = hpos(_g, _i)
        if _p is not None:
            POS2TILE[_p] = f0(_g) + _i
assert sorted(POS2TILE) == list(range(108))

def kE(s, q, j):
    t = POS2TILE[2 * s + (q >> 1)]
    return 16 * t + 4 * (q & 1) + (j if j < 4 else 8 + j - 4)

def fragCE_index(s, T):
    return 10 * (s >> 1) + 2 * T + (s & 1)
```

```python
NSLOT = 40

class Plan:
    def __init__(self):
        self.dry = True
        self.reset()
        self.first, self.last = {}, {}
        self.order = []
        self.points = []
        self.resv = []
        self.slot, self.issue = {}, {}

    def reset(self):
        self.epoch = 0
        self.pt = 0

    def stream(self, name, npages):
        if self.dry:
            self.order += [(name, p) for p in range(npages)]

    def touch(self, page, epoch=None):
        if self.dry:
            e = self.epoch if epoch is None else epoch
            self.first.setdefault(page, e)
            self.last[page] = max(self.last.get(page, e), e)

    def point(self, n, upto=None):
        if self.dry:
            self.points.append((self.epoch, n, upto))
            return []
        self.pt += 1
        return self.issue.get(self.pt - 1, [])

    def reserve(self, slots, e0, e1):
        if self.dry:
            self.resv.append((set(slots), e0, e1))

    def due(self, epoch):
        return [p for p in self.order if self.first.get(p) == epoch]

    def solve(self, verbose=False):
        free_at = [0] * NSLOT
        nxt = 0
        self.issue_epoch = {}
        for i, (e, n, upto) in enumerate(self.points):
            got = []
            while len(got) < n and nxt < len(self.order):
                pg = self.order[nxt]
                if upto is not None and pg[0] not in upto:
                    break
                last = self.last.get(pg, e)
                best = None
                for s in range(NSLOT):
                    if free_at[s] > e:
                        continue
                    nr = min([r[1] for r in self.resv if s in r[0] and r[2] >= e] + [10 ** 6])
                    if nr <= last:
                        continue
                    if best is None or nr < best[0]:
                        best = (nr, s)
                if best is None:
                    break
                self.slot[pg] = best[1]
                free_at[best[1]] = last + 1
                self.issue_epoch[pg] = e
                got.append(pg)
                nxt += 1
            self.issue[i] = got
        assert nxt == len(self.order), f'pages left unissued from {self.order[nxt]}'
        for pg in self.order:
            if pg in self.first:
                assert self.issue_epoch[pg] < self.first[pg], f'page {pg} issued in epoch {self.issue_epoch[pg]} but read in {self.first[pg]}'
        if verbose:
            for pg in self.order:
                print(pg, 'slot', self.slot[pg], 'issue', self.issue_epoch[pg], 'first', self.first.get(pg), 'last', self.last.get(pg))
        self.dry = False
        self.reset()
```

```python
import sys
from asmb import Asm, interleave
from layout import *
from plan import Plan

NAME = 'interleave_layers__sliding_block__glu_gated_reglu__prompt'
SC = 'sc1'

pX0, pWQKV, pWO, pWG, pWU, pWD, pOUT, pDBG, pWS = 4, 6, 8, 12, 14, 16, 18, 20, 22
SWS, SX0, SOUT, ST = 's[24:27]', 's[28:31]', 's[32:35]', 's[36:39]'
sR, sG, sW, sC, sHF, sWP = 's40', 's41', 's42', 's43', 's44', 's45'
sSPIN = 's46'
sKW, sTW, sW1K, sTF, sTB, sTB2 = 's64', 's65', 's66', 's67', 's96', 's97'
sPA, sPC, sPD, sPE, sPD6 = 's98', 's99', 's100', 's101', 's3'
vDMA = 'v8'
RES = 16
QM, QT, OA = 240, 248, 176
vLANE, vL16 = 'v1', 'v2'

def vr(b, n=1, f='v'):
    return f'{f}{b}' if n == 1 else f'{f}[{b}:{b+n-1}]'
def ar(b, n=1):
    return vr(b, n, 'a')

class Gen:
    def __init__(self, stop=None, opts=None):
        self.a = Asm()
        self.plan = Plan()
        self.stop = stop
        self.o = opts or {}
        self.nstamp = 0

    def srd(self, reg, ptr, size):
        a = self.a
        b = int(reg[2:reg.index(':')])
        a(f's_mov_b32 s{b}, s{ptr}\ns_mov_b32 s{b+1}, s{ptr+1}\ns_mov_b32 s{b+2}, {size}\ns_mov_b32 s{b+3}, 0x20000')

    def barrier(self):
        a, p = self.a, self.plan
        for o in a.lg:
            if isinstance(o[1], tuple) and o[1][0] == 'rd':
                p.touch(o[1][1], p.epoch + 1)
        due = [('pg', pg) for pg in p.due(p.epoch + 1)]
        if due and not p.dry:
            a.wait_tag(*due)
        a('s_barrier')
        p.epoch += 1

    def spin(self, addr_v, base, target, tmp_v='v10', tmp_s='s47'):
        a = self.a
        top, done = a.newlabel('spin'), a.newlabel('spun')
        a(f's_mov_b32 {sSPIN}, 0x200000')
        a.wait_lg(0)
        snap = a.snapshot()
        a.label(top)
        a(f'global_load_dword {tmp_v}, {addr_v}, {base} sc1')
        a.force_wait('s_waitcnt vmcnt(0)')
        a(f'v_readfirstlane_b32 {tmp_s}, {tmp_v}')
        a(f's_cmp_ge_u32 {tmp_s}, {target}')
        a.branch(f's_cbranch_scc1 {done}')
        a(f's_sub_u32 {sSPIN}, {sSPIN}, 1\ns_cmp_lg_u32 {sSPIN}, 0')
        a.branch(f's_cbranch_scc1 {top}')
        a.label(done)

    def wave0(self, body):
        a = self.a
        skip = a.newlabel('w0')
        a(f's_cmp_lg_u32 {sW}, 0')
        a.branch(f's_cbranch_scc1 {skip}')
        snap = a.snapshot()
        body()
        a.label(skip)
        a.restore(snap)

    def signal16(self, off_v):
        a = self.a
        a('s_mov_b64 exec, 0xffff')
        a('v_mov_b32 v11, 1')
        a(f'global_atomic_add {off_v}, v11, s[{pWS}:{pWS+1}] sc1')
        a('s_mov_b64 exec, -1')

    def issue_A(self, lds):
        a = self.a
        self.srd(ST, pWQKV, 640 * 3840)
        a(f'v_lshrrev_b32 v4, 4, {vLANE}')
        a(f's_and_b32 s48, {sW}, 1\ns_lshl_b32 s48, s48, 2')
        a('v_add_u32 v5, s48, v4\nv_lshlrev_b32 v5, 1, v5')
        a(f'v_and_b32 v6, 15, {vLANE}\nv_xor_b32 v6, v6, v5')
        a('v_lshlrev_b32 v7, 4, v6')
        a('v_cmp_lt_u32 vcc, 4, v6\nv_mov_b32 v8, 1200\nv_cndmask_b32 v9, 0, v8, vcc\nv_add_u32 v7, v7, v9')
        a('v_cmp_lt_u32 vcc, 9, v6\nv_cndmask_b32 v9, 0, v8, vcc\nv_add_u32 v7, v7, v9')
        a('v_mul_u32_u24 v4, 3840, v4\nv_add_u32 v7, v7, v4')
        a(f's_lshl_b32 s48, {sR}, 6\ns_lshl_b32 s49, {sW}, 3\ns_add_u32 s48, s48, s49\ns_mul_i32 s48, s48, 3840')
        a(f's_mul_i32 s49, {sG}, 80\ns_add_u32 s48, s48, s49')
        a(f's_lshl_b32 s50, {sW}, 10')
        for n in range(4):
            a(f's_add_u32 s49, s48, {(32 * (n >> 1) + 4 * (n & 1)) * 3840}')
            a(f's_add_u32 m0, s50, {lds + n * 4096}')
            a(f'buffer_load_dwordx4 v7, {ST}, s49 offen lds')

    def proc_A(self, lds):
        a = self.a
        a(f'v_lshrrev_b32 v4, 2, {vLANE}')
        a('v_and_b32 v5, 7, v4\nv_lshlrev_b32 v5, 1, v5')
        a(f'v_and_b32 v6, 3, {vLANE}')
        a('v_lshlrev_b32 v4, 8, v4')
        a(f'v_bfe_u32 v7, {vLANE}, 2, 2')
        a('v_mov_b32 v8, 0x3f803f80')
        a('v_cmp_eq_u32 vcc, 0, v7')
        for i in range(4):
            a(f'v_cndmask_b32 v{16+i}, 0, v8, vcc')
        a('v_cmp_eq_u32 vcc, 1, v7')
        for i in range(4):
            a(f'v_cndmask_b32 v{20+i}, 0, v8, vcc')
        c0 = [10, 15, 4, 20, 24, 28, 0, 5]
        lo = sum(c << (8 * i) for i, c in enumerate(c0[:4])); hi = sum(c << (8 * i) for i, c in enumerate(c0[4:]))
        a(f's_mov_b32 s48, {lo}\ns_mov_b32 s49, {hi}')
        a(f's_lshl_b32 s50, {sW}, 4\ns_lshr_b64 s[48:49], s[48:49], s50')
        for e in range(2):
            a(f's_bfe_u32 s50, s48, {(8 << 16) | (8 * e)}')
            if e == 0:
                a(f's_cmp_eq_u32 {sW}, 1\ns_cselect_b32 s51, 5, 1')
            else:
                a('s_mov_b32 s51, 1')
            a(f'v_mul_u32_u24 v9, s51, v6\nv_add_u32 v9, s50, v9')
            a('v_lshrrev_b32 v10, 1, v9\nv_xor_b32 v10, v10, v5\nv_lshlrev_b32 v10, 4, v10')
            a('v_and_b32 v9, 1, v9\nv_lshlrev_b32 v9, 3, v9')
            a(f'v_add3_u32 v{11+e}, v4, v9, v10')
        for e in range(2):
            for ks in range(2):
                d = 24 + (e * 2 + ks) * 4
                for h in range(2):
                    a(f'ds_read_b64_tr_b16 {vr(d+2*h, 2)}, v{11+e} offset:{lds + (32*ks + 16*h) * 256}')
        a(f's_mul_i32 s52, {sG}, {PACKA_SZ}\ns_add_u32 s52, s52, {PACKA}')
        a(f's_mov_b32 s53, 6144\ns_cmp_eq_u32 {sW}, 3\ns_cselect_b32 s53, 2048, s53')
        a(f's_lshl_b32 s54, {sW}, 11\ns_cmp_eq_u32 {sW}, 3\ns_cselect_b32 s54, {120*1024}, s54')
        a(f's_lshl_b32 s55, {sR}, 1\ns_mul_i32 s55, s55, s53\ns_add_u32 s52, s52, s54\ns_add_u32 s52, s52, s55')
        a('s_add_u32 s53, s52, s53')
        first = True
        for e in range(2):
            for ks in range(2):
                d = 24 + (e * 2 + ks) * 4
                a(f'buffer_store_dwordx4 {vr(d,4)}, {vL16}, {SWS}, s{52+ks} offen offset:{e*1024} {SC}')
                a(f'v_mfma_f32_16x16x32_bf16 v[40:43], {vr(16+4*e,4)}, {vr(d,4)}, ' + ('0' if first else 'v[40:43]'))
                first = False
        a(f's_lshl_b32 s52, {sR}, 4\ns_add_u32 s52, s52, {sG}\ns_lshl_b32 s52, s52, 9\ns_lshl_b32 s53, {sW}, 7\ns_add_u32 s52, s52, s53\ns_add_u32 s52, s52, {CSA}')
        a(f'v_lshlrev_b32 v4, 2, {vLANE}')
        a('s_mov_b64 exec, 0xffffffff')
        a(f'buffer_store_dword v40, v4, {SWS}, s52 offen {SC}')
        a('s_mov_b64 exec, -1')

    def sig_A(self):
        a = self.a
        a(f'v_lshlrev_b32 v5, 11, {vLANE}\ns_lshl_b32 s48, {sG}, 7\nv_add_u32 v5, s48, v5')
        self.signal16('v5')

    def pos2tile(self, dst, pos):
        a = self.a
        a(f's_mul_i32 s58, {pos}, 205\ns_lshr_b32 s58, s58, 10')
        a(f's_mul_i32 s59, s58, 5\ns_sub_u32 s59, {pos}, s59')
        a('s_lshr_b32 s60, s58, 2\ns_mul_i32 s60, s60, 27\ns_add_u32 s59, s59, s60')
        a('s_and_b32 s58, s58, 3\ns_mul_i32 s60, s58, 7\ns_add_u32 s59, s59, s60')
        a('s_min_u32 s58, s58, 1\ns_sub_u32 s59, s59, s58')
        a(f's_sub_u32 s58, {pos}, 80\ns_mul_i32 s60, s58, 37\ns_lshr_b32 s60, s60, 8')
        a('s_mul_i32 s61, s60, 7\ns_sub_u32 s58, s58, s61')
        a('s_mul_i32 s60, s60, 27\ns_add_u32 s60, s60, 5')
        a('s_add_u32 s61, s58, 1\ns_lshr_b32 s61, s61, 1\ns_mul_i32 s61, s61, 7\ns_add_u32 s60, s60, s61')
        a('s_and_b32 s58, s58, 1\ns_sub_u32 s60, s60, s58')
        a(f's_cmp_lt_u32 {pos}, 80\ns_cselect_b32 {dst}, s59, s60')

    def issue_other(self, so, lds):
        a = self.a
        lD, lE, lCE, lend = (a.newlabel(x) for x in ('isD', 'isE', 'isCE', 'isend'))
        snap = a.snapshot()
        a(f's_cmp_ge_u32 {so}, 256')
        a.branch(f's_cbranch_scc1 {lE}')
        a(f's_cmp_ge_u32 {so}, 40')
        a.branch(f's_cbranch_scc1 {lD}')
        self.srd(ST, pWO, 640 * 1280)
        a(f's_lshr_b32 s48, {so}, 1')
        a('s_mul_i32 s50, s48, 40\ns_mul_i32 s49, s48, 160\ns_sub_u32 s49, s49, 2544')
        a('s_cmp_lt_u32 s48, 16\ns_cselect_b32 s50, s50, s49\ns_cselect_b32 s51, 20, 80\ns_cselect_b32 s52, 4, 40\ns_cselect_b32 s53, 8, 20')
        a.branch(f's_branch {lCE}')
        a.label(lE)
        self.srd(ST, pWD, 1728 * 1280)
        a(f's_sub_u32 s48, {so}, 256\ns_and_b32 s48, s48, -2')
        self.pos2tile('s50', 's48')
        a('s_add_u32 s48, s48, 1')
        self.pos2tile('s51', 's48')
        a('s_sub_u32 s51, s51, s50\ns_lshl_b32 s51, s51, 4\ns_lshl_b32 s50, s50, 4\ns_mov_b32 s52, 4\ns_mov_b32 s53, 8')
        a.label(lCE)
        a(f's_and_b32 s54, {so}, 1\ns_mul_i32 s54, s54, 640')
        a(f's_mul_i32 s55, {sW}, 320\ns_mul_i32 s56, {sW}, 5120')
        for n in range(5):
            a(f's_add_u32 s57, s55, {64*n}\nv_add_u32 v4, s57, {vLANE}')
            a('v_mul_u32_u24 v5, 1639, v4\nv_lshrrev_b32 v5, 16, v5')
            a('v_mul_u32_u24 v6, 40, v5\nv_sub_u32 v6, v4, v6')
            a('v_and_b32 v7, 3, v5\nv_add_u32 v7, s50, v7')
            a('v_bfe_u32 v8, v5, 3, 1\nv_mul_lo_u32 v8, v8, s51\nv_add_u32 v7, v7, v8')
            a('v_bfe_u32 v8, v5, 2, 1\nv_mad_u32_u24 v7, v8, s52, v7')
            a('v_bfe_u32 v8, v5, 4, 1\nv_mad_u32_u24 v7, v8, s53, v7')
            a('v_mul_u32_u24 v7, 1280, v7\nv_lshl_add_u32 v7, v6, 4, v7')
            a(f's_add_u32 m0, s56, {lds + n * 1024}')
            a(f'buffer_load_dwordx4 v7, {ST}, s54 offen lds')
        a.branch(f's_branch {lend}')
        a.label(lD)
        a.restore(snap)
        a(f's_cmp_lt_u32 {sW}, 2\ns_cselect_b32 s36, s{pWG}, s{pWU}\ns_cselect_b32 s37, s{pWG+1}, s{pWU+1}')
        a(f's_mov_b32 s38, {640*3456}\ns_mov_b32 s39, 0x20000')
        a(f's_sub_u32 s48, {so}, 40\ns_lshr_b32 s49, s48, 3\ns_and_b32 s48, s48, 7')
        a(f's_mul_i32 s48, s48, 80\ns_and_b32 s50, {sW}, 1\ns_mul_i32 s50, s50, 40\ns_add_u32 s48, s48, s50')
        a('s_mul_i32 s48, s48, 3456\ns_lshl_b32 s49, s49, 7\ns_add_u32 s48, s48, s49')
        a(f'v_lshrrev_b32 v4, 3, {vLANE}\nv_mul_u32_u24 v4, 3456, v4\nv_and_b32 v5, 7, {vLANE}\nv_lshl_add_u32 v4, v5, 4, v4')
        a(f's_mul_i32 s56, {sW}, 5120')
        for n in range(5):
            a(f's_add_u32 s49, s48, {8 * n * 3456}')
            a(f's_add_u32 m0, s56, {lds + n * 1024}')
            a(f'buffer_load_dwordx4 v4, {ST}, s49 offen lds')
        a.label(lend)

    def proc_other(self, so, lds):
        a = self.a
        lD, lend = a.newlabel('prD'), a.newlabel('prend')
        snap = a.snapshot()
        a(f's_sub_u32 s48, {so}, 40\ns_cmp_lt_u32 s48, 216')
        a.branch(f's_cbranch_scc1 {lD}')
        a(f'v_lshrrev_b32 v4, 2, {vLANE}\nv_mul_u32_u24 v4, 640, v4\nv_and_b32 v5, 3, {vLANE}\nv_lshl_add_u32 v4, v5, 3, v4')
        a(f's_mul_i32 s49, {sW}, 160\nv_add_u32 v4, s49, v4')
        for t in range(5):
            for h in range(2):
                a(f'ds_read_b64_tr_b16 {vr(24+4*t+2*h, 2)}, v4 offset:{lds + 32*t + h*10240}')
        a(f's_and_b32 s49, {so}, 1\ns_lshl_b32 s49, s49, 2\ns_add_u32 s49, s49, {sW}')
        a(f's_mov_b32 s50, {PACKE_SZ}\ns_cmp_lt_u32 {so}, 40\ns_cselect_b32 s50, {PACKC_SZ}, s50')
        a(f's_mov_b32 s51, {PACKE - 64*10240}\ns_cselect_b32 s51, {PACKC}, s51')
        a(f's_mul_i32 s49, s49, s50\ns_add_u32 s49, s49, s51\ns_lshr_b32 s50, {so}, 2\ns_mul_i32 s50, s50, 10240\ns_add_u32 s49, s49, s50')
        a(f's_bfe_u32 s50, {so}, 0x10001\ns_lshl_b32 s50, s50, 10\ns_add_u32 s49, s49, s50')
        a('s_add_u32 s50, s49, 4096\ns_add_u32 s51, s49, 8192')
        for t in range(5):
            a(f'buffer_store_dwordx4 {vr(24+4*t,4)}, {vL16}, {SWS}, s{49 + t//2} offen offset:{(t%2)*2048} {SC}')
        a.branch(f's_branch {lend}')
        a.label(lD)
        a.restore(snap)
        a(f'v_lshrrev_b32 v4, 5, {vLANE}\nv_lshlrev_b32 v4, 2, v4\nv_bfe_u32 v5, {vLANE}, 2, 2\nv_add_u32 v4, v4, v5\nv_lshlrev_b32 v4, 7, v4')
        a(f'v_bfe_u32 v5, {vLANE}, 4, 1\nv_mul_u32_u24 v5, 10240, v5\nv_add_u32 v4, v4, v5')
        a(f'v_and_b32 v5, 3, {vLANE}\nv_lshl_add_u32 v4, v5, 3, v4')
        a(f's_lshl_b32 s49, {sW}, 5\nv_add_u32 v4, s49, v4')
        for u in range(5):
            for h in range(2):
                row = 32 * (u >> 1) + 8 * (u & 1) + 16 * h if u < 4 else 64 + 8 * h
                a(f'ds_read_b64_tr_b16 {vr(24+4*u+2*h, 2)}, v4 offset:{lds + row*128}')
        for i in range(4):
            a(f'v_mov_b32 v{16+i}, 0x3f803f80')
        a(f's_lshr_b32 s49, s48, 3\ns_lshl_b32 s49, s49, 2\ns_add_u32 s49, s49, {sW}\ns_and_b32 s48, s48, 7')
        a('s_mul_i32 s50, s49, 19\ns_lshr_b32 s50, s50, 9\ns_mul_i32 s51, s50, 27\ns_sub_u32 s51, s49, s51')
        a('s_lshl_b32 s50, s50, 2')
        for thr, step in ((6, 6), (7, 7), (7, 7)):
            a(f's_cmp_ge_u32 s51, {thr}\ns_cselect_b32 s52, 1, 0\ns_cselect_b32 s53, {step}, 0')
            if thr == 6:
                a('s_mov_b32 s54, s52')
            else:
                a('s_and_b32 s52, s52, s54\ns_mul_i32 s53, s53, s52\ns_mov_b32 s54, s52')
            a('s_add_u32 s50, s50, s52\ns_sub_u32 s51, s51, s53')
        a('s_mul_i32 s52, s51, 40\ns_mov_b32 s53, 1')
        a('s_add_u32 s54, s51, 117\ns_cmp_lt_u32 s51, 5\ns_cselect_b32 s52, s54, s52\ns_cselect_b32 s53, 2, s53')
        a('s_cmp_lt_u32 s51, 3\ns_cselect_b32 s52, s51, s52\ns_cselect_b32 s53, 3, s53')
        a('s_mul_i32 s54, s48, 5\ns_mul_i32 s54, s54, s53\ns_add_u32 s52, s52, s54\ns_lshl_b32 s52, s52, 10\ns_lshl_b32 s53, s53, 10')
        a(f's_mul_i32 s50, s50, {PACKD_SZ}\ns_add_u32 s52, s52, s50\ns_add_u32 s52, s52, {PACKD}')
        for u in range(5):
            a(f'buffer_store_dwordx4 {vr(24+4*u,4)}, {vL16}, {SWS}, s52 offen {SC}')
            a(f'v_mfma_f32_32x32x16_bf16 v[44:59], v[16:19], {vr(24+4*u,4)}, ' + ('0' if u == 0 else 'v[44:59]'))
            if u < 4:
                a('s_add_u32 s52, s52, s53')
        a(f's_mul_i32 s48, s48, 108\ns_add_u32 s48, s48, s49\ns_lshl_b32 s48, s48, 7\ns_add_u32 s48, s48, {CSD}')
        a(f'v_lshlrev_b32 v4, 2, {vLANE}')
        a('s_mov_b64 exec, 0xffffffff')
        a(f'buffer_store_dword v44, v4, {SWS}, s48 offen {SC}')
        a('s_mov_b64 exec, -1')
        a.label(lend)

    def sig_other(self, so):
        a = self.a
        a(f's_mov_b32 s48, {TF_PE*128}\ns_cmp_lt_u32 {so}, 256\ns_cselect_b32 s48, {TF_PD*128}, s48\ns_cmp_lt_u32 {so}, 40\ns_cselect_b32 s48, {TF_PC*128}, s48')
        a(f's_add_u32 s48, s48, {TEAMF}')
        a(f'v_lshlrev_b32 v5, 11, {vLANE}\nv_add_u32 v5, s48, v5')
        self.signal16('v5')

    def prologue(self, xloads):
        a = self.a
        a('s_cmp_ge_u32 s2, 256')
        a.branch('s_cbranch_scc0 L_go')
        a('s_endpgm')
        a.label('L_go')
        a('s_load_dwordx16 s[4:19], s[0:1], 0\ns_load_dwordx4 s[20:23], s[0:1], 64')
        a(f'v_lshrrev_b32 v3, 6, v0\nv_and_b32 {vLANE}, 63, v0\nv_readfirstlane_b32 {sW}, v3\nv_lshlrev_b32 {vL16}, 4, {vLANE}')
        a(f's_and_b32 s48, s2, 7\ns_lshr_b32 s49, s2, 3\ns_lshr_b32 s50, s49, 4\ns_lshl_b32 s48, s48, 1\ns_add_u32 {sR}, s48, s50\ns_and_b32 {sG}, s49, 15')
        a(f's_and_b32 {sC}, {sG}, 7\ns_lshr_b32 {sHF}, {sG}, 3')
        a(f's_lshl_b32 s48, {sR}, 4\ns_add_u32 s48, s48, {sG}\ns_add_u32 s49, s48, 96\ns_sub_u32 s48, s48, 160')
        a(f's_cmp_lt_u32 {sR}, 10\ns_cselect_b32 {sWP}, s49, s48')
        a.wait_lg(0)
        self.srd(SWS, pWS, WS_USED)
        self.srd(SX0, pX0, S * D * 2)
        self.srd(SOUT, pOUT, S * D * 2)
        l0 = a.newlabel('nz')
        a('s_cmp_lg_u32 s2, 0')
        a.branch(f's_cbranch_scc1 {l0}')
        snap = a.snapshot()
        a('v_lshlrev_b32 v4, 7, v0\nv_mov_b32 v8, 0\nv_mov_b32 v9, 0\nv_mov_b32 v10, 0\nv_mov_b32 v11, 0')
        a(f's_mov_b32 s48, 32768')
        a(f'buffer_store_dwordx4 v[8:11], v4, {SWS}, 0 offen sc1')
        a(f'buffer_store_dwordx4 v[8:11], v4, {SWS}, s48 offen sc1')
        a.force_wait('s_waitcnt vmcnt(0)')
        self.barrier()
        a('v_mov_b32 v4, 0\nv_mov_b32 v5, 1\ns_mov_b64 exec, 1')
        a(f'global_store_dword v4, v5, s[{pDBG}:{pDBG+1}] sc1')
        a('s_mov_b64 exec, -1')
        a.label(l0)
        a.restore(snap)
        lo, lj = a.newlabel('oth'), a.newlabel('join')
        a(f's_cmp_lt_u32 {sR}, 10')
        a.branch(f's_cbranch_scc0 {lo}')
        self.issue_A(0)
        a.branch(f's_branch {lj}')
        a.label(lo)
        self.issue_other(sWP, 0)
        a.label(lj)
        a(f's_add_u32 s62, {sWP}, 96')
        self.issue_other('s62', 20480)
        a.vm = []
        a.force_wait('s_waitcnt vmcnt(5)')
        self.barrier()
        lo, lj = a.newlabel('oth'), a.newlabel('join')
        a(f's_cmp_lt_u32 {sR}, 10')
        a.branch(f's_cbranch_scc0 {lo}')
        self.proc_A(0)
        a.branch(f's_branch {lj}')
        a.label(lo)
        self.proc_other(sWP, 0)
        a.label(lj)
        a.vm = []
        def wait_init():
            a('v_mov_b32 v5, 0')
            self.spin('v5', f's[{pDBG}:{pDBG+1}]', 1)
        self.wave0(wait_init)
        n = xloads()
        a.force_wait(f's_waitcnt vmcnt({n})')
        self.barrier()
        def sig0():
            lo, lj = a.newlabel('oth'), a.newlabel('join')
            a(f's_cmp_lt_u32 {sR}, 10')
            a.branch(f's_cbranch_scc0 {lo}')
            self.sig_A()
            a.branch(f's_branch {lj}')
            a.label(lo)
            self.sig_other(sWP)
            a.label(lj)
        self.wave0(sig0)
        snap = a.snapshot()
        self.proc_other('s62', 20480)
        a.force_wait('s_waitcnt vmcnt(0)')
        self.barrier()
        self.wave0(lambda: self.sig_other('s62'))
        l3 = a.newlabel('no3')
        a(f's_cmp_lt_u32 {sWP}, 12')
        a.branch(f's_cbranch_scc0 {l3}')
        a(f's_add_u32 s62, {sWP}, 352')
        self.issue_other('s62', 0)
        a.force_wait('s_waitcnt vmcnt(0)')
        self.barrier()
        self.proc_other('s62', 0)
        a.force_wait('s_waitcnt vmcnt(0)')
        self.barrier()
        self.wave0(lambda: self.sig_other('s62'))
        a.label(l3)
        a.vm = []

    def stamp(self):
        if not self.o.get('stamps'):
            return
        a = self.a
        a('s_memtime s[68:69]')
        a.wait_lg(0)
        a(f'v_writelane_b32 v62, s68, {self.nstamp}')
        self.nstamp += 1

    def dump_stamps(self):
        if not self.o.get('stamps'):
            return
        a = self.a
        a(f's_lshl_b32 s48, s2, 2\ns_add_u32 s48, s48, {sW}\ns_lshl_b32 s48, s48, 8\ns_add_u32 s48, s48, {DBG}')
        a(f'v_lshlrev_b32 v9, 2, {vLANE}')
        a(f'buffer_store_dword v62, v9, {SWS}, s48 offen')

    def rd(self, dst, stream, frag, bases):
        pg = (stream, frag >> 2)
        self.plan.touch(pg)
        addr = self.plan.slot.get(pg, 0) * 4096 + (frag & 3) * 1024
        self.a(f'ds_read_b128 {dst}, {bases[addr >> 16]} offset:{addr & 0xffff}', tag=('rd', pg))

    def dma(self, n=1, upto=None):
        a = self.a
        for pg in self.plan.point(n, upto):
            kind = pg[0][0]
            base = {'A': sPA, 'C': sPC, 'D': sPD, 'E': sPE}[kind]
            if kind == 'D' and pg[1] >= 60:
                base = sPD6
            a(f's_add_u32 m0, {sW1K}, {self.plan.slot[pg] * 4096}')
            a(f's_add_u32 s63, {base}, {pg[1] * 4096}')
            a(f'buffer_load_dwordx4 {vDMA}, {SWS}, s63 offen {SC} lds', tag=('pg', pg))

    def team_addr(self, line):
        self.a(f's_add_u32 s48, {sTF}, {line * 128}\nv_mov_b32 v9, s48')

    def signal_team(self, line):
        a = self.a
        def body():
            self.team_addr(line)
            a('v_mov_b32 v11, 1\ns_mov_b64 exec, 1')
            a(f'global_atomic_add v9, v11, s[{pWS}:{pWS+1}] sc1')
            a('s_mov_b64 exec, -1')
        self.wave0(body)

    def wait_team(self, line, target=16):
        def body():
            self.team_addr(line)
            self.spin('v9', f's[{pWS}:{pWS+1}]', target)
        self.wave0(body)
        self.barrier()

    def mean_rstd(self, mean, rstd, s_, u_, t):
        a = self.a
        a(f'v_mul_f32 {mean}, {1/640!r}, {s_}\nv_mul_f32 {t}, {1/640!r}, {u_}')
        a(f'v_fma_f32 {t}, -{mean}, {mean}, {t}\nv_max_f32 {t}, 0, {t}\nv_add_f32 {t}, 1e-05, {t}\nv_rsq_f32 {rstd}, {t}')

    def split_pair(self, d0, d1, x, t0, t1, neg):
        a = self.a
        a(f'v_cvt_pk_bf16_f32 {t0}, {x}, {x}\nv_lshlrev_b32 {t0}, 16, {t0}\nv_sub_f32 {t1}, {x}, {t0}')
        if neg:
            a(f'v_cvt_pk_bf16_f32 {d0}, -{t0}, -{t1}\nv_cvt_pk_bf16_f32 {d1}, -{t0}, 0')
        else:
            a(f'v_cvt_pk_bf16_f32 {d0}, {t0}, {t0}\nv_cvt_pk_bf16_f32 {d1}, {t1}, 0')

    def setup(self):
        a = self.a
        a(f'v_add_u32 v3, 65536, {vL16}\nv_add_u32 v4, 131072, {vL16}')
        a(f's_lshr_b32 {sKW}, {sW}, 1\ns_and_b32 {sTW}, {sW}, 1\ns_lshl_b32 {sW1K}, {sW}, 10')
        a(f's_lshl_b32 s48, {sKW}, 10\nv_add_u32 v5, s48, {vL16}\nv_add_u32 v6, 65536, v5\nv_add_u32 v7, 131072, v5')
        a(f'v_add_u32 {vDMA}, {sW1K}, {vL16}')
        a(f's_mul_i32 {sPA}, {sG}, {PACKA_SZ}\ns_add_u32 {sPA}, {sPA}, {PACKA}')
        a(f's_mul_i32 {sPC}, {sC}, {PACKC_SZ}\ns_add_u32 {sPC}, {sPC}, {PACKC}')
        a(f's_mul_i32 {sPD}, {sG}, {PACKD_SZ}\ns_add_u32 {sPD}, {sPD}, {PACKD}')
        a(f's_mul_i32 {sPE}, {sC}, {PACKE_SZ}\ns_add_u32 {sPE}, {sPE}, {PACKE}')
        a(f's_and_b32 s48, {sG}, 3\ns_cmp_eq_u32 s48, 0\ns_cselect_b32 {sPD6}, 0x7f000000, {sPD}')
        a(f's_lshl_b32 {sTF}, {sR}, 11\ns_add_u32 {sTF}, {sTF}, {TEAMF}')
        a(f's_lshl_b32 {sTB}, {sR}, 2\ns_add_u32 {sTB}, {sTB}, {sW}')
        a(f's_lshl_b32 {sTB2}, {sR}, 2\ns_lshl_b32 s48, {sHF}, 1\ns_add_u32 {sTB2}, {sTB2}, s48\ns_add_u32 {sTB2}, {sTB2}, {sTW}')

    def xloads_A0(self):
        a = self.a
        a(f's_lshl_b32 s48, {sR}, 7\ns_lshl_b32 s49, {sW}, 5\ns_add_u32 s48, s48, s49')
        a(f'v_and_b32 v60, 15, {vLANE}\nv_add_u32 v60, s48, v60\nv_mul_u32_u24 v60, 1280, v60')
        a(f'v_lshrrev_b32 v61, 4, {vLANE}\nv_lshl_add_u32 v60, v61, 4, v60\nv_add_u32 v61, 20480, v60')
        for s in range(20):
            for tb in range(2):
                a(f'buffer_load_dwordx4 {ar((2*s+tb)*4, 4)}, v{60+tb}, {SX0}, 0 offen offset:{64*s}')
        return 40

    def stats_A_tail(self, mean, rstd):
        a = self.a
        c = DH ** -0.5 * 1.4426950408889634
        a(f'v_lshrrev_b32 v44, 4, {vLANE}\nv_lshlrev_b32 v44, 4, v44')
        a(f'v_cmp_gt_u32 vcc, 32, {vLANE}')
        for tb in range(2):
            self.split_pair(f'v{28+2*tb}', f'v{29+2*tb}', mean[tb], 'v45', 'v46', True)
            a(f'v_mov_b32 v{26+tb}, {rstd[tb]}')
            a(f'v_mul_f32 v{40+tb}, {c!r}, {rstd[tb]}')
            a(f'v_cndmask_b32 v{42+tb}, v{26+tb}, v{40+tb}, vcc')
            for j in range(4):
                a(f'ds_bpermute_b32 v{32+4*tb+j}, v44, v{26+tb} offset:{4*j}')

    def stats_A0(self):
        a = self.a
        for i in range(4):
            a(f'v_mov_b32 v{48+i}, 0x3f803f80')
        for s in range(20):
            for tb in range(2):
                x = ar((2*s+tb)*4, 4)
                a(f'v_mfma_f32_16x16x32_bf16 {vr(208+8*tb,4)}, v[48:51], {x}, ' + ('0' if s == 0 else vr(208+8*tb,4)))
                a(f'v_mfma_f32_16x16x32_bf16 {vr(212+8*tb,4)}, {x}, {x}, ' + ('0' if s == 0 else vr(212+8*tb,4)))
        a(f'v_and_b32 v52, 3, {vLANE}\nv_and_b32 v53, 15, {vLANE}\nv_bfe_u32 v54, {vLANE}, 2, 2\nv_lshl_add_u32 v53, v54, 4, v53\nv_lshlrev_b32 v53, 2, v53')
        for j in range(1, 4):
            a(f'v_cmp_eq_u32 vcc, {j}, v52')
            for tb in range(2):
                a(f'v_cndmask_b32 v{212+8*tb}, v{212+8*tb}, v{212+8*tb+j}, vcc')
        for tb in range(2):
            a(f'ds_bpermute_b32 v{213+8*tb}, v53, v{212+8*tb}')
        for tb in range(2):
            self.mean_rstd(f'v{224+tb}', f'v{226+tb}', f'v{208+8*tb}', f'v{213+8*tb}', 'v55')
        self.stats_A_tail(['v224', 'v225'], ['v226', 'v227'])

    def stats_A1_loads(self):
        a = self.a
        a(f's_lshl_b32 s48, {sTB}, 5\nv_and_b32 v47, 15, {vLANE}\nv_add_u32 v47, s48, v47')
        a(f'v_lshrrev_b32 v48, 5, {vLANE}\nv_lshl_add_u32 v47, v48, 4, v47\nv_lshlrev_b32 v47, 2, v47')
        a(f'v_bfe_u32 v48, {vLANE}, 4, 1\nv_lshl_add_u32 v47, v48, 13, v47')
        return [f's_mov_b32 s49, {ST2 + c * 16384}\nbuffer_load_dword v{48+c}, v47, {SWS}, s49 offen {SC}' for c in range(8)]

    def stats_A1(self):
        a = self.a
        for c in range(1, 8):
            a(f'v_add_f32 v48, v48, v{48+c}')
        a('v_mov_b32 v49, v48\nv_permlane16_swap_b32 v48, v49')
        self.mean_rstd('v50', 'v52', 'v48', 'v49', 'v55')
        a('v_mov_b32 v51, v50\nv_mov_b32 v53, v52\nv_permlane32_swap_b32 v50, v51\nv_permlane32_swap_b32 v52, v53')
        self.stats_A_tail(['v50', 'v51'], ['v52', 'v53'])

    def colsum_A(self):
        a = self.a
        a(f'v_lshlrev_b32 v47, 2, {vLANE}\ns_lshl_b32 s48, {sG}, 9\ns_add_u32 s48, s48, {CSA}')
        for p in range(10):
            for e in range(2):
                a(f'buffer_load_dword v{208+2*p+e}, v47, {SWS}, s48 offen offset:{256*e} {SC}')
            if p < 9:
                a('s_add_u32 s48, s48, 8192')
        for p in range(1, 10):
            for e in range(2):
                a(f'v_add_f32 v{208+e}, v{208+e}, v{208+2*p+e}')
        a(f'v_lshrrev_b32 v47, 4, {vLANE}')
        for e in range(2):
            self.split_pair(f'v{212+2*e}', f'v{213+2*e}', f'v{208+e}', 'v45', 'v46', False)
        for t in range(8):
            a(f'v_cmp_eq_u32 vcc, {t & 3}, v47')
            for k in range(2):
                a(f'v_cndmask_b32 v45, 0, v{212 + 2*(t >> 2) + k}, vcc\nv_accvgpr_write_b32 a{216+2*t+k}, v45')

    def phase_A(self, l):
        a, p = self.a, self.plan
        st = f'A{l}'
        B = ['v2', 'v3', 'v4']
        acc = lambda ti, tb: vr(112 + (ti * 2 + tb) * 4, 4)
        X = lambda s, tb: ar((2 * s + tb) * 4, 4)
        wb = lambda s, i: vr(64 + (s & 1) * 24 + i * 4, 4)
        xl, sl = [], []
        if l == 1:
            self.wait_team(TF_X2)
            a(f's_lshl_b32 s50, {sTB}, 1\ns_mul_i32 s50, s50, 20480\ns_add_u32 s50, s50, {X2}')
            for s in range(20):
                for tb in range(2):
                    xl.append(f's_add_u32 s51, s50, {tb * 20480 + (s & ~3) * 1024}\n'
                              f'buffer_load_dwordx4 {X(s, tb)}, {vL16}, {SWS}, s51 offen offset:{(s & 3) * 1024} {SC}')
            for x in xl[:14]:
                a(x)
            xl = xl[14:]
            sl = self.stats_A1_loads()
        else:
            self.barrier()
        self.stamp()
        for i in range(6):
            self.rd(wb(0, i), st, fragA_index(i, 0), B)
        for s in range(20):
            if s % 4 == 3:
                if s == 15:
                    self.img_from = p.epoch + 1
                self.barrier()
            a.wait_regs(X(s, 0), X(s, 1), *[wb(s, i) for i in range(6)])
            main = []
            for ti in range(6):
                for tb in range(2):
                    ab = (wb(s, ti), X(s, tb)) if ti < 3 else (X(s, tb), wb(s, ti))
                    main.append(f'v_mfma_f32_16x16x32_bf16 {acc(ti, tb)}, {ab[0]}, {ab[1]}, ' + ('0' if s == 0 else acc(ti, tb)))
            if s < 19:
                fill = [(lambda i=i: self.rd(wb(s + 1, i), st, fragA_index(i, s + 1), B)) for i in range(6)]
            else:
                fill = [(lambda i=i: self.rd(wb(0, i), st, fragA_index(6 + i, 0), B)) for i in range(2)]
            for _ in range(2):
                if xl:
                    fill.append(xl.pop(0))
                elif sl:
                    fill.append(sl.pop(0))
                else:
                    fill.append(lambda: self.dma(1))
            interleave(a, main, fill)
        if l == 1:
            self.stats_A1()
        self.stamp()
        for ti in range(6):
            for tb in range(2):
                w, x = ar(216 + 2 * ti, 2), vr(28 + 2 * tb, 2)
                ab = (w, x) if ti < 3 else (x, w)
                a(f'v_mfma_f32_16x16x16bf16_1k {acc(ti, tb)}, {ab[0]}, {ab[1]}, {acc(ti, tb)}')
        a(f's_lshl_b32 s50, {sR}, 4\ns_add_u32 s50, s50, {sG}\ns_mul_i32 s50, s50, {4*BLK}\ns_mul_i32 s51, {sW}, {BLK}\ns_add_u32 s50, s50, s51\ns_add_u32 s50, s50, {KV[l]}')
        a(f's_add_u32 s51, s51, {8*BLK}\nv_add_u32 v56, s51, {vL16}')
        a(f'v_lshrrev_b32 v57, 4, {vLANE}\nv_mul_u32_u24 v57, 768, v57\nv_and_b32 v58, 15, {vLANE}\nv_lshl_add_u32 v57, v58, 4, v57')
        a('v_add_u32 v58, s51, v57')
        a(f'v_and_b32 v59, 15, {vLANE}\nv_mov_b32 v60, 0x3f803f80')
        def scale_pack(ti, R, fac):
            for tb in range(2):
                b = 112 + (ti * 2 + tb) * 4
                for j in range(4):
                    a(f'v_mul_f32 v{b+j}, v{b+j}, {fac(tb, j)}')
                a(f'v_cvt_pk_bf16_f32 v{R+2*tb}, v{b}, v{b+1}\nv_cvt_pk_bf16_f32 v{R+2*tb+1}, v{b+2}, v{b+3}')
        for ti in range(3):
            R = 208 + 4 * ti
            scale_pack(ti, R, lambda tb, j: f'v{(42 if ti == 2 else 26) + tb}')
            a(f'v_permlane16_swap_b32 v{R}, v{R+2}\nv_permlane16_swap_b32 v{R+1}, v{R+3}')
            if ti == 2:
                a('s_mov_b32 exec_lo, 0')
            off = ti * 1024 if ti < 2 else 2048 - 512
            a(f'buffer_store_dwordx4 {vr(R,4)}, {vL16}, {SWS}, s50 offen offset:{off} {SC}', tag='kv')
            a(f'ds_write_b128 v56, {vr(R,4)} offset:{off}')
            if ti == 2:
                a('s_mov_b32 exec_lo, -1')
        for i in range(3):
            R = 220 + 4 * i
            scale_pack(3 + i, R, lambda tb, j: f'v{32 + 4*tb + j}')
            a(f'v_permlane32_swap_b32 v{R}, v{R+2}\nv_permlane32_swap_b32 v{R+1}, v{R+3}')
            if i == 2:
                a('v_cmp_eq_u32 vcc, 8, v59')
                for k in range(4):
                    a(f'v_cndmask_b32 v{R+k}, v{R+k}, v60, vcc')
            a(f'buffer_store_dwordx4 {vr(R,4)}, v57, {SWS}, s50 offen offset:{2560 + 256*i} {SC}', tag='kv')
            a(f'ds_write_b128 v58, {vr(R,4)} offset:{2560 + 256*i}')
        a(f'v_cmp_gt_u32 vcc, 32, {vLANE}')
        for k in range(4):
            a(f'v_cndmask_b32 v{QT+k}, 0, v{216+k}, vcc')
        self.stamp()
        wq = lambda s, i: vr(64 + (s % 3) * 8 + i * 4, 4) if s else wb(0, i)
        def sig_kv():
            a.wait_tag('kv')
            self.barrier()
            def body():
                a(f's_lshl_b32 s48, {sR}, 4\ns_add_u32 s48, s48, {sG}\ns_add_u32 s48, s48, 16\ns_lshl_b32 s48, s48, 7\ns_add_u32 s48, s48, {4 + 4*l}')
                a(f'v_lshlrev_b32 v9, 11, {vLANE}\nv_add_u32 v9, s48, v9\nv_mov_b32 v11, 1')
                a(f's_sub_u32 s48, 15, {sR}\ns_min_u32 s48, s48, 2\ns_bfm_b64 exec, s48, 0')
                skip = a.newlabel('nosig')
                a.branch(f's_cbranch_execz {skip}')
                a(f'global_atomic_add v9, v11, s[{pWS}:{pWS+1}] sc1')
                a.label(skip)
                a('s_mov_b64 exec, -1')
            self.wave0(body)
        wq = lambda s, i: vr(64 + (s % 4) * 8 + i * 4, 4)
        for i in range(2):
            self.rd(wq(1, i), st, fragA_index(6 + i, 1), B)
        for s in range(20):
            if s == 10:
                sig_kv()
            a.wait_regs(wq(s, 0), wq(s, 1))
            main = [f'v_mfma_f32_16x16x32_bf16 {acc(6+ti, tb)}, {wq(s, ti)}, {X(s, tb)}, ' + ('0' if s == 0 else acc(6+ti, tb))
                    for ti in range(2) for tb in range(2)]
            fill = [(lambda i=i: self.rd(wq(s + 2, i), st, fragA_index(6 + i, s + 2), B)) for i in range(2)] if s < 18 else []
            fill.append(lambda: self.dma(1))
            interleave(a, main, fill)
        for ti in range(6, 8):
            for tb in range(2):
                a(f'v_mfma_f32_16x16x16bf16_1k {acc(ti, tb)}, {ar(216 + 2*ti, 2)}, {vr(28 + 2*tb, 2)}, {acc(ti, tb)}')
        for h in range(2):
            R = QM + 4 * h
            scale_pack(6 + h, R, lambda tb, j: f'v{40 + tb}')
            a(f'v_permlane16_swap_b32 v{R}, v{R+2}\nv_permlane16_swap_b32 v{R+1}, v{R+3}')
        self.stamp()
        def wait_kv():
            a(f's_lshl_b32 s48, {sR}, 4\ns_add_u32 s48, s48, {sG}\ns_lshl_b32 s48, s48, 7\ns_add_u32 s48, s48, {4 + 4*l}')
            a(f'v_mov_b32 v9, s48\ns_min_u32 s49, {sR}, 2')
            self.spin('v9', f's[{pWS}:{pWS+1}]', 's49')
        self.wave0(wait_kv)
        a.wait_lg(0)
        self.barrier()
        a(f's_lshl_b32 s50, {sR}, 4\ns_add_u32 s50, s50, {sG}\ns_mul_i32 s50, s50, {4*BLK}\ns_add_u32 s50, s50, {KV[l]}')
        a(f's_sub_u32 s51, s50, {32 * 4 * BLK}\ns_cmp_lt_u32 {sR}, 2\ns_cselect_b32 s51, 0x7f000000, s51')
        a(f's_sub_u32 s52, s50, {17 * 4 * BLK}\ns_cmp_lt_u32 {sR}, 1\ns_cselect_b32 s52, 0x7f000000, s52')
        a(f's_cmp_lt_u32 {sW}, 2\ns_cselect_b32 s53, s51, s52')
        for n in range(11):
            src = 's51' if n < 5 else ('s53' if n == 5 else 's52')
            a(f's_add_u32 m0, {sW1K}, {n * 4096}\ns_add_u32 s63, {src}, {n * 4096}')
            a(f'buffer_load_dwordx4 {vDMA}, {SWS}, s63 offen {SC} lds', tag='halo')
        a.wait_tag('halo')
        self.barrier()
        self.stamp()

    def attn_exact(self):
        a = self.a
        SR, KM, KT, V0, PR = 112, 128, 132, 136, 144
        a(f's_sub_u32 s50, 8, {sTB}\ns_cmp_lt_u32 {sTB}, 8\ns_cselect_b32 s50, s50, 0')
        a(f's_add_u32 s51, s50, {sW}\ns_mul_i32 s51, s51, {BLK}')
        a(f'v_and_b32 v44, 31, {vLANE}\nv_lshrrev_b32 v45, 5, {vLANE}\nv_lshlrev_b32 v46, 2, v45\nv_sub_u32 v46, v44, v46')
        a('v_mov_b32 v47, 0xf149f2ca')
        for h in range(2):
            O = OA + 16 * h
            def scores(first):
                a(f'ds_read_b128 {vr(KM,4)}, v48 offset:{1024*h}\nds_read_b64 {vr(KT,2)}, v49 offset:{2048 + 8*h}')
                a(f'v_mfma_f32_32x32x16_bf16 {vr(SR,16)}, {vr(KM,4)}, {vr(QM+4*h,4)}, 0')
                a(f'v_mfma_f32_32x32x8bf16_1k {vr(SR,16)}, {vr(KT,2)}, {vr(QT+2*h,2)}, {vr(SR,16)}')
                for kb, cmpop in ((0, 'lt'), (8, 'ge')):
                    skip = a.newlabel('nomask')
                    a(f's_cmp_lg_u32 s52, {kb}')
                    a.branch(f's_cbranch_scc1 {skip}')
                    for i in range(16):
                        a(f'v_cmp_{cmpop}_i32 vcc, v46, {8*(i >> 2) + (i & 3)}'.replace(f'vcc, v46, {8*(i >> 2) + (i & 3)}', f'vcc, v46, v{160+i}'))
                        a(f'v_cndmask_b32 v{SR+i}, v47, v{SR+i}, vcc')
                    a.label(skip)
            for i in range(16):
                a(f'v_mov_b32 v{160+i}, {8*(i >> 2) + (i & 3)}')
            a(f'v_add_u32 v48, s51, {vL16}\nv_lshl_add_u32 v49, v44, 4, s51\ns_mov_b32 s52, s50\nv_mov_b32 v50, v47')
            top = a.newlabel('mx')
            a.label(top)
            scores(True)
            for i in range(0, 16, 2):
                a(f'v_max3_f32 v50, v50, v{SR+i}, v{SR+i+1}')
            a(f'v_add_u32 v48, {BLK}, v48\nv_add_u32 v49, {BLK}, v49\ns_add_u32 s52, s52, 1\ns_cmp_le_u32 s52, 8')
            a.branch(f's_cbranch_scc1 {top}')
            a('v_mov_b32 v51, v50\nv_permlane32_swap_b32 v50, v51\nv_max_f32 v50, v50, v51')
            a(f'v_add_u32 v48, s51, {vL16}\nv_lshl_add_u32 v49, v44, 4, s51\ns_mov_b32 s52, s50')
            a(f'v_add_u32 v51, {20*h}, v44\nv_cmp_gt_u32 vcc, 20, v44\nv_cndmask_b32 v51, 40, v51, vcc')
            a('v_mul_u32_u24 v52, 48, v45\nv_add_u32 v51, v51, v52\nv_lshl_add_u32 v51, v51, 4, s51')
            for i in range(16):
                a(f'v_mov_b32 v{O+i}, 0')
            top = a.newlabel('pv')
            a.label(top)
            scores(False)
            a(f'ds_read_b128 {vr(V0,4)}, v51 offset:2560\nds_read_b128 {vr(V0+4,4)}, v51 offset:{2560+1536}')
            for i in range(16):
                a(f'v_sub_f32 v{SR+i}, v{SR+i}, v50')
            for i in range(16):
                a(f'v_exp_f32 v{SR+i}, v{SR+i}')
            for i in range(8):
                a(f'v_cvt_pk_bf16_f32 v{PR+i}, v{SR+2*i}, v{SR+2*i+1}')
            for t in range(2):
                a(f'v_mfma_f32_32x32x16_bf16 {vr(O,16)}, {vr(V0+4*t,4)}, {vr(PR+4*t,4)}, {vr(O,16)}')
            a(f'v_add_u32 v48, {BLK}, v48\nv_add_u32 v49, {BLK}, v49\nv_add_u32 v51, {BLK}, v51\ns_add_u32 s52, s52, 1\ns_cmp_le_u32 s52, 8')
            a.branch(f's_cbranch_scc1 {top}')

    def phase_B(self, l):
        a, p = self.a, self.plan
        self.dma(40)
        self.attn_exact()
        self.stamp()
        a(f's_mul_i32 s50, {sTB}, 40960\ns_add_u32 s50, s50, {OB[l]}\ns_lshl_b32 s51, {sG}, 11\ns_add_u32 s51, s51, s50')
        a(f's_lshr_b32 s52, {sG}, 1\ns_lshl_b32 s52, s52, 10\ns_add_u32 s52, s52, s50\ns_and_b32 s53, {sG}, 1\ns_lshl_b32 s53, s53, 9\ns_add_u32 s52, s52, s53\ns_add_u32 s52, s52, 32768')
        for h in range(2):
            O = OA + 16 * h
            a(f'v_rcp_f32 v44, v{O+12}')
            for i in range(12):
                a(f'v_mul_f32 v{O+i}, v{O+i}, v44')
            for i in range(4):
                a(f'v_cvt_pk_bf16_f32 v{112+4*h+i}, v{O+2*i}, v{O+2*i+1}')
            for i in range(2):
                a(f'v_cvt_pk_bf16_f32 v{120+2*h+i}, v{O+8+2*i}, v{O+9+2*i}')
            a(f'buffer_store_dwordx4 {vr(112+4*h,4)}, {vL16}, {SWS}, s51 offen offset:{1024*h} {SC}', tag='o')
        a('s_mov_b32 exec_hi, 0')
        a(f'buffer_store_dwordx4 v[120:123], {vL16}, {SWS}, s52 offen {SC}', tag='o')
        a('s_mov_b32 exec_hi, -1')
        a.wait_tag('o')
        p.reserve(range(17), self.img_from, p.epoch)
        self.barrier()
        self.signal_team(TF_O + 8 * l)
        self.dma(self.o.get('burstB', 12))

    def load_res0(self):
        a = self.a
        a(f's_lshl_b32 s48, {sTB2}, 5\ns_lshl_b32 s49, {sKW}, 4\ns_add_u32 s48, s48, s49')
        a(f'v_and_b32 v44, 15, {vLANE}\nv_add_u32 v44, s48, v44\nv_mul_u32_u24 v44, 1280, v44')
        a(f'v_lshrrev_b32 v45, 4, {vLANE}\nv_lshl_add_u32 v44, v45, 3, v44\ns_mul_i32 s48, {sC}, 160')
        for T in range(5):
            a(f'buffer_load_dwordx2 {vr(RES+2*T,2)}, v44, {SX0}, s48 offen offset:{32*T}')

    def phase_CE(self, l, kind):
        a, p = self.a, self.plan
        isC = kind == 'C'
        st = f'{kind}{l}'
        NS = 10 if isC else 27
        B = ['v5', 'v6', 'v7']
        acc = lambda tb, T: vr(112 + (tb * 5 + T) * 4, 4)
        X = lambda n, tb: ar((2 * n + tb) * 4, 4)
        wb = lambda n, T: vr(64 + (n & 1) * 20 + T * 4, 4)
        for T in range(5):
            b = 112 + T * 4
            for k in range(2):
                a(f'v_lshlrev_b32 v{b+2*k}, 16, v{RES+2*T+k}\nv_and_b32 v{b+2*k+1}, 0xffff0000, v{RES+2*T+k}')
        a(f'v_lshrrev_b32 v44, 5, {vLANE}\nv_lshlrev_b32 v44, 10, v44\nv_bfe_u32 v45, {vLANE}, 4, 1\nv_lshl_add_u32 v44, v45, 9, v44')
        a(f'v_and_b32 v45, 15, {vLANE}\nv_lshl_add_u32 v44, v45, 4, v44\ns_mul_i32 s48, {sKW}, 2304\nv_add_u32 v45, s48, v44')
        a(f's_mul_i32 s48, {sKW}, 1792\ns_add_u32 s48, s48, 256\nv_add_u32 v46, s48, v44')
        a(f's_mul_i32 s50, {sTB2}, {40960 if isC else 110592}\ns_add_u32 s50, s50, {OB[l] if isC else HB[l]}')
        xl = []
        for n in range(NS):
            xl.append(f's_add_u32 s51, s50, {n * 4096}\nbuffer_load_dwordx4 {X(n, 0)}, v45, {SWS}, s51 offen {SC}')
            xl.append(f'buffer_load_dwordx4 {X(n, 1)}, v46, {SWS}, s51 offen {SC}')
        self.wait_team((TF_O if isC else TF_H1) + 8 * l)
        self.stamp()
        lead = 20 if isC else 16
        for x in xl[:lead]:
            a(x)
        issued = lead
        for T in range(5):
            self.rd(wb(0, T), st, 2 * T, B)
        per = 5 if isC else 4
        for n in range(NS):
            if n % per == per - 1 and n < NS - 1:
                self.barrier()
                self.scr_from = p.epoch
            if not isC and n == 8:
                self.team_addr(TF_H2 + 8 * l)
                a(f'global_load_dword v47, v9, s[{pWS}:{pWS+1}] sc1')
            if not isC and n == 12:
                ok = a.newlabel('h2ok')
                a('v_readfirstlane_b32 s47, v47\ns_cmp_ge_u32 s47, 16')
                a.branch(f's_cbranch_scc1 {ok}')
                snap = a.snapshot()
                self.spin('v9', f's[{pWS}:{pWS+1}]', 16)
                a.label(ok)
                a.restore(snap)
            a.wait_regs(X(n, 0), X(n, 1), *[wb(n, T) for T in range(5)])
            main = [f'v_mfma_f32_16x16x32_bf16 {acc(tb, T)}, {wb(n, T)}, {X(n, tb)}, ' + ('0' if n == 0 and tb == 1 else acc(tb, T))
                    for T in range(5) for tb in range(2)]
            fill = [(lambda T=T: self.rd(wb(n + 1, T), st, 10 * (n + 1) + 2 * T, B)) for T in range(5)] if n < NS - 1 else []
            for _ in range(2):
                if issued < len(xl):
                    fill.append(xl[issued]); issued += 1
            if n < NS - (5 if isC else 3):
                fill += [lambda: self.dma(1)] * (2 if isC else 2)
            interleave(a, main, fill)
        self.stamp()
        SCR = 35 * 4096
        a(f's_mul_i32 s48, {sW}, 5120\ns_xor_b32 s49, {sW}, 2\ns_mul_i32 s49, s49, 5120')
        a(f's_add_u32 s48, s48, {SCR}\ns_add_u32 s49, s49, {SCR}\nv_add_u32 v47, s48, {vL16}\nv_add_u32 v48, s49, {vL16}')
        for T in range(5):
            a(f'ds_write_b128 v47, {acc(1, T)} offset:{1024*T}')
        a.wait_lg(0)
        self.barrier()
        for T in range(5):
            a(f'ds_read_b128 {acc(1, T)}, v48 offset:{1024*T}')
        for T in range(5):
            b = 112 + T * 4
            for j in range(4):
                a(f'v_add_f32 v{b+j}, v{b+j}, v{b+20+j}')
            a(f'v_cvt_pk_bf16_f32 v{RES+2*T}, v{b}, v{b+1}\nv_cvt_pk_bf16_f32 v{RES+2*T+1}, v{b+2}, v{b+3}')
        last = (not isC) and l == 1
        q = 'v49'
        a(f'v_lshrrev_b32 {q}, 4, {vLANE}\nv_and_b32 v50, 15, {vLANE}')
        if isC:
            a(f's_mul_i32 s50, {sTB2}, 40960\ns_mul_i32 s51, {sC}, 5120\ns_add_u32 s50, s50, s51\ns_lshl_b32 s51, {sKW}, 8\ns_add_u32 s50, s50, s51\ns_add_u32 s50, s50, {X1[l]}')
            a(f'v_and_b32 v51, 1, {q}\nv_lshlrev_b32 v51, 9, v51\nv_lshl_add_u32 v51, v50, 4, v51\nv_lshrrev_b32 v52, 1, {q}')
            a('v_lshl_add_u32 v53, v52, 10, v51\nv_lshl_add_u32 v54, v52, 3, v51\ns_add_u32 s51, s50, 4096')
            for pr in range(2):
                a(f'buffer_store_dwordx4 {vr(RES+4*pr,4)}, v53, {SWS}, s50 offen offset:{2048*pr} {SC}', tag='x')
            a(f'buffer_store_dwordx2 {vr(RES+8,2)}, v54, {SWS}, s51 offen {SC}', tag='x')
        else:
            for k in range(8):
                a(f'v_mov_b32 v{208+k}, v{RES+k}')
            for pr in range(2):
                a(f'v_permlane16_swap_b32 v{208+4*pr}, v{210+4*pr}\nv_permlane16_swap_b32 v{209+4*pr}, v{211+4*pr}')
            a(f'v_and_b32 v51, 1, {q}\nv_lshlrev_b32 v51, 1, v51\nv_lshrrev_b32 v52, 1, {q}\nv_add_u32 v51, v51, v52')
            if last:
                a(f's_lshl_b32 s48, {sTB2}, 5\ns_lshl_b32 s49, {sKW}, 4\ns_add_u32 s48, s48, s49\nv_add_u32 v53, s48, v50\nv_mul_u32_u24 v53, 1280, v53')
                a(f'v_lshl_add_u32 v54, {q}, 3, v53\nv_lshl_add_u32 v53, v51, 4, v53\ns_mul_i32 s50, {sC}, 160')
                for pr in range(2):
                    a(f'buffer_store_dwordx4 {vr(208+4*pr,4)}, v53, {SOUT}, s50 offen offset:{64*pr}')
                a(f'buffer_store_dwordx2 {vr(RES+8,2)}, v54, {SOUT}, s50 offen offset:128')
            else:
                a(f's_lshl_b32 s50, {sTB2}, 1\ns_add_u32 s50, s50, {sKW}\ns_mul_i32 s50, s50, 20480\ns_add_u32 s50, s50, {X2}')
                a(f's_mul_i32 s48, {sC}, 10\nv_add_u32 v51, s48, v51\nv_lshlrev_b32 v53, 8, v51\nv_lshl_add_u32 v53, v50, 4, v53')
                a(f's_add_u32 s48, s48, 8\nv_add_u32 v52, s48, v52\nv_lshlrev_b32 v54, 8, v52\nv_lshl_add_u32 v54, v50, 4, v54')
                a(f'v_and_b32 v52, 1, {q}\nv_lshl_add_u32 v54, v52, 3, v54')
                for pr in range(2):
                    a(f'buffer_store_dwordx4 {vr(208+4*pr,4)}, v53, {SWS}, s50 offen offset:{1024*pr} {SC}', tag='x')
                a(f'buffer_store_dwordx2 {vr(RES+8,2)}, v54, {SWS}, s50 offen {SC}', tag='x')
        if not last:
            a('v_mov_b32 v55, 0x3f803f80\nv_mov_b32 v56, 0\nv_mov_b32 v57, 0')
            for k in range(10):
                a(f'v_dot2_f32_bf16 v56, v{RES+k}, v55, v56\nv_dot2_f32_bf16 v57, v{RES+k}, v{RES+k}, v57')
            a('s_nop 2')
            a('v_permlane32_swap_b32 v56, v57\nv_add_f32 v56, v56, v57\nv_mov_b32 v57, v56\nv_permlane16_swap_b32 v56, v57\nv_add_f32 v56, v56, v57')
            a(f's_lshl_b32 s48, {sTB2}, 5\ns_lshl_b32 s49, {sKW}, 4\ns_add_u32 s48, s48, s49\nv_add_u32 v50, s48, v50\nv_lshlrev_b32 v50, 2, v50')
            a(f'v_lshrrev_b32 v51, 5, {vLANE}\nv_lshl_add_u32 v50, v51, 13, v50\ns_lshl_b32 s48, {sC}, 14\ns_add_u32 s48, s48, {ST1[l] if isC else ST2}')
            a('s_mov_b32 exec_lo, 0xffff\ns_mov_b32 exec_hi, 0xffff')
            a(f'buffer_store_dword v56, v50, {SWS}, s48 offen {SC}', tag='x')
            a('s_mov_b64 exec, -1')
            a.wait_tag('x')
            p.reserve(range(35, 40), self.scr_from, p.epoch)
            self.barrier()
            self.signal_team((TF_X1 + 8 * l) if isC else TF_X2)
            self.dma(self.o.get('burstC', 40))
        else:
            p.reserve(range(35, 40), self.scr_from, p.epoch)
        self.stamp()

    def colsum_D(self):
        a = self.a
        a(f's_lshr_b32 s48, {sG}, 2\ns_mul_i32 s48, s48, 27\ns_and_b32 s49, {sG}, 3\ns_mul_i32 s50, s49, 7\ns_add_u32 s48, s48, s50\ns_min_u32 s49, s49, 1\ns_sub_u32 s48, s48, s49')
        a(f's_lshl_b32 s48, s48, 7\ns_add_u32 s48, s48, {CSD}\nv_lshlrev_b32 v47, 2, {vLANE}')
        for pp in range(8):
            for e in range(4):
                a(f'buffer_load_dword v{208+4*pp+e}, v47, {SWS}, s48 offen offset:{256*e} {SC}')
            if pp < 7:
                a(f's_add_u32 s48, s48, {108*128}')
        for pp in range(1, 8):
            for e in range(4):
                a(f'v_add_f32 v{208+e}, v{208+e}, v{208+4*pp+e}')
        for e in range(4):
            self.split_pair(f'v{212+2*e}', f'v{213+2*e}', f'v{208+e}', 'v45', 'v46', False)
        for par in range(2):
            a(f'v_cmp_gt_u32 vcc, 32, {vLANE}' if par == 0 else f'v_cmp_le_u32 vcc, 32, {vLANE}')
            for i in range(par, 7, 2):
                for k in range(2):
                    a(f'v_cndmask_b32 v45, 0, v{212 + 2*(i >> 1) + k}, vcc\nv_accvgpr_write_b32 a{232+2*i+k}, v45')

    def phase_D(self, l):
        a, p = self.a, self.plan
        st = f'D{l}'
        B = ['v2', 'v3', 'v4']
        X = lambda s: ar(4 * s, 4)
        passes = [([0, 1, 2], 112), ([3, 4], 160), ([5], 112), ([6], 128)]
        a(f's_mul_i32 s50, {sTB}, 40960\ns_add_u32 s50, s50, {X1[l]}')
        xl = [(f's_add_u32 s51, s50, {s * 1024}\n' if s % 4 == 0 else '') +
              f'buffer_load_dwordx4 {X(s)}, {vL16}, {SWS}, s51 offen offset:{(s & 3) * 1024} {SC}' for s in range(40)]
        a(f's_lshl_b32 s48, {sTB}, 5\nv_and_b32 v47, 31, {vLANE}\nv_add_u32 v47, s48, v47\nv_lshlrev_b32 v47, 2, v47')
        a(f'v_lshrrev_b32 v48, 5, {vLANE}\nv_lshl_add_u32 v47, v48, 13, v47')
        sl = [f's_mov_b32 s49, {ST1[l] + c * 16384}\nbuffer_load_dword v{48+c}, v47, {SWS}, s49 offen {SC}' for c in range(8)]
        a(f's_mul_i32 s52, {sTB}, 110592\ns_add_u32 s52, s52, {HB[l]}')
        a(f's_mul_i32 s53, {sG}, 5120\ns_add_u32 s53, s53, s52')
        a(f's_lshr_b32 s48, {sG}, 2\ns_mul_i32 s48, s48, 7\ns_and_b32 s49, {sG}, 3\ns_lshl_b32 s54, s49, 1\ns_min_u32 s55, s49, 1\ns_sub_u32 s54, s54, s55')
        a('s_add_u32 s54, s54, s48\ns_add_u32 s54, s54, 80\ns_lshl_b32 s54, s54, 10\ns_add_u32 s54, s54, s52')
        a('s_add_u32 s55, s54, 1024\ns_cmp_eq_u32 s49, 0\ns_cselect_b32 s55, 0x7f000000, s55\ns_add_u32 s56, s53, 4096')
        hdst = [('s53', 0), ('s53', 1024), ('s53', 2048), ('s53', 3072), ('s56', 0), ('s54', 0), ('s55', 0)]
        self.wait_team(TF_X1 + 8 * l)
        self.stamp()
        for x in xl[:14]:
            a(x)
        xl = xl[14:]
        def epilogue(i, b):
            items = []
            R = 208 + 4 * (i & 1)
            for j in range(8):
                items += [f'v_max_f32 v{b+j}, 0, v{b+j}', f'v_mul_f32 v{b+8+j}, v{b+8+j}, v58', f'v_mul_f32 v{b+j}, v{b+j}, v{b+8+j}']
            items += [f'v_cvt_pk_bf16_f32 v{R+k}, v{b+2*k}, v{b+2*k+1}' for k in range(4)]
            items.append((f'buffer_store_dwordx4 {vr(R,4)}, {vL16}, {SWS}, {hdst[i][0]} offen offset:{hdst[i][1]} {SC}', 'h1' if i < 5 else 'h2'))
            return items
        def stats():
            for c in range(1, 8):
                yield f'v_add_f32 v48, v48, v{48+c}'
            yield 'v_mov_b32 v49, v48'
            yield 'v_permlane32_swap_b32 v48, v49'
            yield lambda: self.mean_rstd('v50', 'v58', 'v48', 'v49', 'v55')
            yield lambda: self.split_pair('v56', 'v57', 'v50', 'v45', 'v46', True)
            yield 'v_mul_f32 v58, v58, v58'
        pend = []
        NB = 4
        seq = [(pi, s) for pi in range(4) for s in range(40)]
        def wreg(k, ii):
            return vr(64 + (k % NB) * 12 + ii * 4, 4)
        def reads(k):
            pi, s = seq[k]
            return [(lambda ii=ii, i=i: self.rd(wreg(k, ii), st, fragD_index(i, s), B)) for ii, i in enumerate(passes[pi][0])]
        look = [1, 2, 3, 3]
        done = 0
        for k in range(1):
            for r in reads(k):
                r()
            done += 1
        ep = [8, 10, 20, 20]
        for k, (pi, s) in enumerate(seq):
            tiles, ab = passes[pi]
            if s % ep[pi] == ep[pi] - look[pi] and k < len(seq) - 10:
                if pi == 2 and s > 30:
                    a.wait_tag('h1')
                self.barrier()
                if pi == 2 and s > 30:
                    self.signal_team(TF_H1 + 8 * l)
            regs = [wreg(k, ii) for ii in range(len(tiles))]
            a.wait_regs(X(s), *regs)
            fill = []
            while done <= min(k + look[pi], len(seq) - 1):
                fill += reads(done); done += 1
            if xl:
                fill.append(xl.pop(0))
            elif sl:
                fill.append(sl.pop(0))
            elif not (pi == 3 and s > 20):
                fill.append(lambda: self.dma(1))
            if pi == 0 and s == 36:
                pend = list(stats())
            for _ in range(4 * len(tiles)):
                if pend:
                    fill.append(pend.pop(0))
            main = [f'v_mfma_f32_32x32x16_bf16 {vr(ab+16*ii,16)}, {regs[ii]}, {X(s)}, ' + ('0' if s == 0 else vr(ab+16*ii,16)) for ii in range(len(tiles))]
            per = -(-len(fill) // len(main))
            interleave(a, main, fill, per=per)
            if s == 39:
                assert not pend
                for ii, i in enumerate(tiles):
                    a(f'v_mfma_f32_32x32x8bf16_1k {vr(ab+16*ii,16)}, {ar(232+2*i,2)}, v[56:57], {vr(ab+16*ii,16)}')
                    pend += epilogue(i, ab + 16 * ii)
                if pi < 3:
                    pend = [lambda: None] * 8 + pend
        self.stamp()
        interleave(a, [], pend)
        a.wait_tag('h2')
        self.barrier()
        self.signal_team(TF_H2 + 8 * l)
        self.dma(self.o.get('burstD', 4))
        self.stamp()

    def body(self):
        a, p = self.a, self.plan
        for l in range(2):
            p.stream(f'A{l}', 40); p.stream(f'C{l}', 25); p.stream(f'D{l}', 70); p.stream(f'E{l}', 68)
        self.stamp()
        self.prologue(self.xloads_A0)
        self.setup()
        self.stamp()
        self.stats_A0()
        self.load_res0()
        def wait_packs():
            a(f's_lshl_b32 s48, {sR}, 4\ns_add_u32 s48, s48, {sG}\ns_lshl_b32 s48, s48, 7\nv_mov_b32 v9, s48')
            self.spin('v9', f's[{pWS}:{pWS+1}]', 10)
            for line, n in ((TF_PC, 40), (TF_PD, 216), (TF_PE, 108)):
                self.team_addr(line)
                self.spin('v9', f's[{pWS}:{pWS+1}]', n)
        self.wave0(wait_packs)
        self.barrier()
        self.stamp()
        self.dma(40)
        self.colsum_A()
        self.colsum_D()
        for l in range(2):
            for ph in 'ABCDE':
                if ph == 'A': self.phase_A(l)
                if ph == 'B': self.phase_B(l)
                if ph == 'C': self.phase_CE(l, 'C')
                if ph == 'D': self.phase_D(l)
                if ph == 'E': self.phase_CE(l, 'E')
                if self.stop == f'{ph}{l}' and not p.dry:
                    a.wait_vm(0)
                    self.dump_stamps()
                    return
        self.dump_stamps()

    def header(self):
        head = open('cdna_kernels/' + NAME + '.s.ref').read().split('\n')
        lines = [l for l in head if l.startswith(';') and '@launch' not in l and 'Override' not in l and 'grid=ceil' not in l]
        lines.append('; @launch grid=(256,1,1) block=(256,1,1) lds=163840')
        lines += ['.amdgcn_target "amdgcn-amd-amdhsa--gfx950"', '.text', f'.globl {NAME}_kernel', '.p2align 8',
                  f'.type {NAME}_kernel,@function', f'{NAME}_kernel:']
        return '\n'.join(lines) + '\n'

    def footer(self):
        return f""".section .rodata,"a"
.p2align 6
.amdhsa_kernel {NAME}_kernel
  .amdhsa_next_free_vgpr 512
  .amdhsa_next_free_sgpr 102
  .amdhsa_accum_offset 256
  .amdhsa_group_segment_fixed_size 0
  .amdhsa_kernarg_size 80
  .amdhsa_user_sgpr_count 2
  .amdhsa_user_sgpr_kernarg_segment_ptr 1
  .amdhsa_system_sgpr_workgroup_id_x 1
.end_amdhsa_kernel
"""

    def build(self):
        self.body()
        self.plan.solve(self.o.get('vplan'))
        self.a = Asm()
        self.nstamp = 0
        self.body()
        self.a('s_endpgm')
        return self.header() + self.a.text() + self.footer()

if __name__ == '__main__':
    opts = dict(kv.split('=') if '=' in kv else (kv, '1') for kv in sys.argv[2:])
    g = Gen(stop=opts.get('stop'), opts=opts)
    txt = g.build()
    open(sys.argv[1], 'w').write(txt)
    print('instructions', g.a.count, 'nops', g.a.nops)
```
